```python
import torch

def _softmax(x, axis=-1):
    return torch.softmax(x, dim=axis)
def _gelu(x):
    return torch.nn.functional.gelu(x, approximate="tanh")
def _silu(x):
    return torch.nn.functional.silu(x)
def _sigmoid(x):
    return torch.sigmoid(x)
def _layernorm(x, axis=-1, eps=1e-5):
    m = x.mean(dim=axis, keepdim=True)
    v = x.var(dim=axis, keepdim=True, unbiased=False)
    return (x - m) / torch.sqrt(v + eps)
def _scatter_add(tgt, idx, src, axis=0):
    return tgt.clone().index_add_(axis, idx, src)
def _segment_sum(src, seg, n):
    out = torch.zeros((n,) + src.shape[1:], dtype=src.dtype)
    return out.index_add_(0, seg, src)
def _pad(x, pw):
    flat = tuple(v for pair in reversed(pw) for v in pair)
    return torch.nn.functional.pad(x, flat)

kernel_name = 'concat_heads__mha_block_cached__gqa_block_cached__near_ridge'

def setup_inputs():

    _w = (lambda a: (lambda t: t.to(torch.bfloat16) if t.is_floating_point() else t)(torch.as_tensor(a)))
    def _A_setup():
        B, Sq, D = 32, 32, 512
        H, Sk, Dh = 32, 32, 128
        return {
            "x": _w((lambda *s: torch.randn(*s, dtype=torch.bfloat16) * 0.8)(B, Sq, D)),
            "k_cache": _w((lambda *s: torch.randn(*s, dtype=torch.bfloat16) * 0.8)(B, H, Sk, Dh)),
            "v_cache": _w((lambda *s: torch.randn(*s, dtype=torch.bfloat16) * 0.05)(B, H, Sk, Dh)),
            "wq": _w((lambda *s: torch.randn(*s, dtype=torch.bfloat16) * 0.8)(D, H * Dh) * (D ** -0.5)),
            "wo": _w((lambda *s: torch.randn(*s, dtype=torch.bfloat16) * 0.05)(H * Dh, D) * ((H * Dh) ** -0.5)),
        }
    _A_in = _A_setup()

    def _B_setup():
        B, Sq, D = 32, 32, 512
        Hq, Hkv, Sk, Dh = 32, 32, 32, 128
        assert Hq % Hkv == 0, (Hq, Hkv)
        return {
            "x": _w((lambda *s: torch.randn(*s, dtype=torch.bfloat16) * 0.8)(B, Sq, D)),
            "k_cache": _w((lambda *s: torch.randn(*s, dtype=torch.bfloat16) * 0.8)(B, Hkv, Sk, Dh)),
            "v_cache": _w((lambda *s: torch.randn(*s, dtype=torch.bfloat16) * 0.05)(B, Hkv, Sk, Dh)),
            "wq": _w((lambda *s: torch.randn(*s, dtype=torch.bfloat16) * 0.8)(D, Hq * Dh) * (D ** -0.5)),
            "wo": _w((lambda *s: torch.randn(*s, dtype=torch.bfloat16) * 0.05)(Hq * Dh, D) * ((Hq * Dh) ** -0.5)),
        }
    _B_in = _B_setup()

    return {
        "A_x": _A_in["x"],
        "A_k_cache": _A_in["k_cache"],
        "A_v_cache": _A_in["v_cache"],
        "A_wq": _A_in["wq"],
        "A_wo": _A_in["wo"],
        "B_x": _B_in["x"],
        "B_k_cache": _B_in["k_cache"],
        "B_v_cache": _B_in["v_cache"],
        "B_wq": _B_in["wq"],
        "B_wo": _B_in["wo"],
    }

def reference(A_x, A_k_cache, A_v_cache, A_wq, A_wo, B_x, B_k_cache, B_v_cache, B_wq, B_wo):
    def _A_ref(x, k_cache, v_cache, wq, wo):
        B, Sq, D = x.shape
        H, Dh = 32, 128
        q = (lambda x, *d: x.permute(*d))((x @ wq).reshape(B, Sq, H, Dh), 0, 2, 1, 3)
        scores = torch.einsum("bhqd,bhkd->bhqk", q, k_cache) * (Dh ** -0.5)
        p = _softmax(scores, axis=-1)
        o = torch.einsum("bhqk,bhkd->bhqd", p, v_cache)
        return (lambda x, *d: x.permute(*d))(o, 0, 2, 1, 3).reshape(B, Sq, H * Dh) @ wo

    def _B_ref(x, k_cache, v_cache, wq, wo):
        B, Sq, D = x.shape
        Hq, Dh = 32, 128
        Hkv = k_cache.shape[1]
        rep = Hq // Hkv
        q = (lambda x, *d: x.permute(*d))((x @ wq).reshape(B, Sq, Hq, Dh), 0, 2, 1, 3)
        k = (lambda x, n, axis: torch.repeat_interleave(x, n, dim=axis))(k_cache, rep, axis=1)
        v = (lambda x, n, axis: torch.repeat_interleave(x, n, dim=axis))(v_cache, rep, axis=1)
        scores = torch.einsum("bhqd,bhkd->bhqk", q, k) * (Dh ** -0.5)
        p = _softmax(scores, axis=-1)
        o = torch.einsum("bhqk,bhkd->bhqd", p, v)
        return (lambda x, *d: x.permute(*d))(o, 0, 2, 1, 3).reshape(B, Sq, Hq * Dh) @ wo

    a = _A_ref(A_x, A_k_cache, A_v_cache, A_wq, A_wo)
    b = _B_ref(B_x, B_k_cache, B_v_cache, B_wq, B_wo)
    return torch.concatenate([a, b], axis=-1)
```

```python
class Asm:
    def __init__(self):
        self.lines=[]
        self.lgkm=[]
        self.vm=[]
        self.uid=0
    def __call__(self,s):
        for l in s.split("\n"):
            l=l.strip()
            if l: self.lines.append("  "+l)
    def c(self,s): self.lines.append("  ; "+s)
    def label(self,n): self.lines.append(n+":")
    def raw(self,s): self.lines.append(s)
    def newlabel(self,p="L"):
        self.uid+=1; return "%s_%d"%(p,self.uid)
    def ds(self,s,tag=None):
        self(s); self.lgkm.append(tag)
        assert len(self.lgkm)<=15, "lgkmcnt overflow %d"%len(self.lgkm)
    def wait_lgkm(self,tags):
        if not isinstance(tags,(list,set)): tags=[tags]
        last=-1
        for i,t in enumerate(self.lgkm):
            if t in tags: last=i
        if last<0: return
        n=len(self.lgkm)-1-last
        self("s_waitcnt lgkmcnt(%d)"%n)
        self.lgkm=self.lgkm[last+1:]
    def wait_lgkm0(self):
        self("s_waitcnt lgkmcnt(0)"); self.lgkm=[]
    def vmem(self,s,tag=None):
        self(s); self.vm.append(tag)
        assert len(self.vm)<=63
    def wait_vm(self,tags):
        if not isinstance(tags,(list,set)): tags=[tags]
        last=-1
        for i,t in enumerate(self.vm):
            if t in tags: last=i
        if last<0: return
        n=len(self.vm)-1-last
        self("s_waitcnt vmcnt(%d)"%n)
        self.vm=self.vm[last+1:]
    def wait_vm0(self):
        self("s_waitcnt vmcnt(0)"); self.vm=[]
    def text(self): return "\n".join(self.lines)+"\n"

def vr(b,n=1):
    return "v%d"%b if n==1 else "v[%d:%d]"%(b,b+n-1)
def sr(b,n=1):
    return "s%d"%b if n==1 else "s[%d:%d]"%(b,b+n-1)

def kernel_header(a,name):
    a.raw(".globl %s"%name)
    a.raw(".p2align 8")
    a.raw(".type %s,@function"%name)
    a.raw("%s:"%name)

def kernel_desc(name,vgpr,sgpr,accum=None):
    if accum is None: accum=(vgpr+3)//4*4
    return """.p2align 6
.amdhsa_kernel %s
  .amdhsa_next_free_vgpr %d
  .amdhsa_next_free_sgpr %d
  .amdhsa_accum_offset %d
  .amdhsa_group_segment_fixed_size 0
  .amdhsa_kernarg_size 104
  .amdhsa_user_sgpr_count 2
  .amdhsa_user_sgpr_kernarg_segment_ptr 1
  .amdhsa_system_sgpr_workgroup_id_x 1
.end_amdhsa_kernel
"""%(name,vgpr,sgpr,accum)
```

```python
import sys
from asmlib import *

OPT=dict(a.split("=") for a in sys.argv[2:]) if len(sys.argv)>2 else {}
STAMP=int(OPT.get("stamp",0))
OST=OPT.get("ost","sc1")
KVNT=OPT.get("kvnt","nt")
XWF=OPT.get("xwf","")
WOF=OPT.get("wof","")
ROT=int(OPT.get("rot",1))
NOCOMP=int(OPT.get("nocomp",0))
NOLOAD=int(OPT.get("noload",0))
ILV=int(OPT.get("ilv",0))
PBAR=int(OPT.get("pbar",0))
KVA=[int(x) for x in OPT.get("kva","-1,1,3,5").split(",")]
KVB=[int(x) for x in OPT.get("kvb","0,2,4,5").split(",")]
KVPOS=OPT.get("kvpos","after")
NOKV=int(OPT.get("nokv",0))
NOX=int(OPT.get("nox",0))
NOW=int(OPT.get("now",0))

WS_O=0
WS_EX=16<<20
WS_FLAG=32<<20
WS_STAMP=200<<20

SCALE_LOG2E=0.08838834764831845*1.4426950408889634
import struct
def f2u(f): return struct.unpack("<I",struct.pack("<f",f))[0]

def stamp(a,idx,kern):
    if not STAMP: return
    a("%s s[%d:%d]"%("s_memtime" if STAMP==2 else "s_memrealtime",80+2*idx,81+2*idx))

def stamp_flush(a,n,kern):
    if not STAMP: return
    L=a.newlabel("Lst")
    a("s_waitcnt lgkmcnt(0)")
    a("s_load_dwordx2 s[76:77], s[0:1], 96")
    a("s_waitcnt lgkmcnt(0)")
    a("s_add_u32 s76, s76, %d"%(WS_STAMP+kern*262144))
    a("s_addc_u32 s77, s77, 0")
    a("s_lshl_b32 s78, s2, 3")
    a("s_add_u32 s78, s78, s33")
    a("s_lshl_b32 s78, s78, 7")
    a("v_mov_b32 v1, s78")
    a("v_and_b32 v2, 63, v0")
    a("v_cmp_eq_u32 vcc, 0, v2")
    a("s_and_saveexec_b64 s[78:79], vcc")
    a("s_cbranch_execz %s"%L)
    for i in range(n):
        a("v_mov_b32 v2, s%d"%(80+2*i))
        a("v_mov_b32 v3, s%d"%(81+2*i))
        a("global_store_dwordx2 v1, v[2:3], s[76:77] offset:%d"%(8*i))
        a("s_nop 1")
    a.label(L)

def common_decode(a):
    a("s_and_b32 s26, s2, 7")
    a("s_lshr_b32 s27, s2, 3")
    a("s_lshr_b32 s28, s26, 2")
    a("s_and_b32 s29, s26, 3")
    a("v_lshrrev_b32 v1, 6, v0")
    a("v_and_b32 v2, 63, v0")
    a("s_nop 0")
    a("v_readfirstlane_b32 s33, v1")

def srd(a,base,lo,hi,size):
    a("s_mov_b32 s%d, s%d"%(base,lo))
    a("s_mov_b32 s%d, s%d"%(base+1,hi))
    a("s_mov_b32 s%d, 0x%x"%(base+2,size))
    a("s_mov_b32 s%d, 0x00020000"%(base+3))

def tr_pattern(a,vdst,vlane,t0,t1,t2):
    a("v_bfe_u32 %s, %s, 2, 2"%(vr(t0),vr(vlane)))
    a("v_bfe_u32 %s, %s, 4, 1"%(vr(t1),vr(vlane)))
    a("v_lshlrev_b32 %s, 2, %s"%(vr(t1),vr(t1)))
    a("v_and_b32 %s, 1, %s"%(vr(t2),vr(vlane)))
    a("v_lshl_add_u32 %s, %s, 1, %s"%(vr(t1),vr(t2),vr(t1)))
    a("v_bfe_u32 %s, %s, 1, 1"%(vr(t2),vr(vlane)))
    a("v_add_u32 %s, %s, %s"%(vr(t1),vr(t1),vr(t2)))
    a("v_lshlrev_b32 %s, 3, %s"%(vr(t1),vr(t1)))
    a("v_lshrrev_b32 %s, 5, %s"%(vr(t2),vr(vlane)))
    a("v_lshl_add_u32 %s, %s, 3, %s"%(vr(t2),vr(t2),vr(t0)))
    a("v_lshl_add_u32 %s, %s, 8, %s"%(vr(t1),vr(t2),vr(t1)))
    for t in range(4):
        a("v_xor_b32 %s, %d, %s"%(vr(t2),t,vr(t0)))
        a("v_lshl_add_u32 %s, %s, 6, %s"%(vr(vdst+t),vr(t2),vr(t1)))

def gen_k1(a):
    kernel_header(a,"k1_kernel")
    END="K1_END"
    a("s_cmp_ge_u32 s2, 256")
    a("s_cbranch_scc1 %s"%END)
    stamp(a,0,0)
    a("s_load_dwordx8 s[8:15], s[0:1], 0")
    a("s_load_dwordx8 s[16:23], s[0:1], 40")
    a("s_load_dwordx2 s[24:25], s[0:1], 96")
    common_decode(a)
    a("s_and_b32 s30, s27, 7")
    a("s_lshr_b32 s31, s27, 3")
    a("s_lshl_b32 s32, s29, 3")
    a("s_add_u32 s32, s32, s30")
    a("s_lshl_b32 s34, s31, 3")
    a("s_add_u32 s34, s34, s33")
    if ROT:
        a("s_lshl_b32 s35, s31, 1")
        a("s_add_u32 s35, s35, s30")
        a("s_and_b32 s35, s35, 7")
    else:
        a("s_mov_b32 s35, 0")
    V_L=2; VXA=4; VWA=8; VXD=12; VWD=16; VL16=18; VT0=20; VT1=21; VT2=22; VT3=23
    VKW=24; VVW=25; VKA=26; VVA=28
    ACC=64; KR=128; VR=160; AF=192; BF=208; QF=192; SA=224; PF=240; TM=244
    XBASE=0; WBASE=98304
    a("v_lshrrev_b32 v%d, 3, v%d"%(VT0,V_L))
    a("v_bfe_u32 v%d, v%d, 4, 1"%(VT1,V_L))
    a("v_lshlrev_b32 v%d, 2, v%d"%(VT1,VT1))
    a("v_and_b32 v%d, 7, v%d"%(VT2,V_L))
    a("v_xor_b32 v%d, v%d, v%d"%(VT2,VT2,VT1))
    a("v_lshlrev_b32 v%d, 12, v%d"%(VT0,VT0))
    for j in range(4):
        a("v_xor_b32 v%d, %d, v%d"%(VT3,j,VT2))
        a("v_lshl_add_u32 v%d, v%d, 4, v%d"%(VXD+j,VT3,VT0))
    a("v_lshrrev_b32 v%d, 4, v%d"%(VT0,V_L))
    a("v_lshlrev_b32 v%d, 2, v%d"%(VT1,VT0))
    a("v_and_b32 v%d, 15, v%d"%(VT2,V_L))
    a("v_xor_b32 v%d, v%d, v%d"%(VT2,VT2,VT1))
    a("v_lshlrev_b32 v%d, 4, v%d"%(VT2,VT2))
    a("v_lshl_add_u32 v%d, v%d, 13, v%d"%(VWD,VT0,VT2))
    a("v_add_u32 v%d, %d, v%d"%(VWD+1,4*8192-1024,VWD))
    a("v_lshl_add_u32 v%d, v%d, 8, v%d"%(VVW,VT0,VT2))
    a("v_and_b32 v%d, 15, v%d"%(VT2,V_L))
    a("v_xor_b32 v%d, v%d, v%d"%(VT2,VT2,VT0))
    a("v_lshlrev_b32 v%d, 4, v%d"%(VT2,VT2))
    a("v_lshl_add_u32 v%d, v%d, 8, v%d"%(VKW,VT0,VT2))
    a("v_lshlrev_b32 v%d, 4, v%d"%(VL16,V_L))
    a("v_and_b32 v%d, 3, v%d"%(VT0,V_L))
    a("v_bfe_u32 v%d, v%d, 3, 1"%(VT1,V_L))
    a("v_lshl_add_u32 v%d, v%d, 2, v%d"%(VT1,VT1,VT0))
    a("v_lshrrev_b32 v%d, 5, v%d"%(VT2,V_L))
    a("v_xor_b32 v%d, v%d, v%d"%(VT1,VT1,VT2))
    a("v_lshlrev_b32 v%d, 4, v%d"%(VT1,VT1))
    a("v_lshl_add_u32 v%d, v%d, 10, v%d"%(VT1,VT0,VT1))
    a("v_bfe_u32 v%d, v%d, 2, 3"%(VT0,V_L))
    a("v_lshl_add_u32 v%d, v%d, 7, v%d"%(VT1,VT0,VT1))
    a("s_mul_i32 s67, s33, 12288")
    a("v_add_u32 v%d, s67, v%d"%(VT1,VT1))
    for s in range(4):
        a("v_xor_b32 v%d, %d, v%d"%(VXA+s,32*s,VT1))
    tr_pattern(a,VWA,V_L,VT0,VT1,VT2)
    for t in range(4):
        a("v_add_u32 v%d, s67, v%d"%(VVA+t,VWA+t))
        a("v_add_u32 v%d, %d, v%d"%(VWA+t,WBASE,VWA+t))
    a("v_add_u32 v%d, s67, v%d"%(VVW,VVW))
    a("v_add_u32 v%d, s67, v%d"%(VKW,VKW))
    a("v_and_b32 v%d, 3, v%d"%(VT0,V_L))
    a("v_bfe_u32 v%d, v%d, 2, 1"%(VT1,V_L))
    a("v_lshl_add_u32 v%d, v%d, 3, v%d"%(VT0,VT1,VT0))
    a("v_bfe_u32 v%d, v%d, 3, 1"%(VT1,V_L))
    a("v_lshl_add_u32 v%d, v%d, 2, v%d"%(VT0,VT1,VT0))
    a("v_bfe_u32 v%d, v%d, 4, 1"%(VT1,V_L))
    a("v_lshl_add_u32 v%d, v%d, 4, v%d"%(VT0,VT1,VT0))
    a("v_and_b32 v%d, 15, v%d"%(VT1,VT0))
    a("v_lshrrev_b32 v%d, 5, v%d"%(VT2,V_L))
    a("v_xor_b32 v%d, v%d, v%d"%(VT1,VT1,VT2))
    a("v_lshlrev_b32 v%d, 4, v%d"%(VT1,VT1))
    a("v_lshl_add_u32 v%d, v%d, 8, v%d"%(VKA,VT0,VT1))
    a("v_add_u32 v%d, s67, v%d"%(VKA,VKA))
    a("s_lshl_b32 s56, s34, 15")
    a("s_lshl_b32 s57, s33, 16")
    a("s_lshl_b32 s58, s32, 8")
    a("s_add_u32 s57, s57, s58")
    a("s_lshl_b32 s61, s34, 5")
    a("s_add_u32 s61, s61, s32")
    a("s_lshl_b32 s61, s61, 13")
    a("s_add_u32 s62, s61, 4096")
    a("s_mul_i32 s59, s33, 12288")
    a("s_lshl_b32 s60, s33, 11")
    a("s_add_u32 s60, s60, %d"%WBASE)
    a("s_waitcnt lgkmcnt(0)")
    stamp(a,1,0)
    a("s_cmp_eq_u32 s28, 0")
    for i in range(8):
        a("s_cselect_b32 s%d, s%d, s%d"%(8+i,8+i,16+i))
    srd(a,36,8,9,1<<20)
    srd(a,44,10,11,8<<20)
    srd(a,48,12,13,8<<20)
    srd(a,40,14,15,4<<20)
    a("s_add_u32 s24, s24, %d"%WS_O)
    a("s_addc_u32 s25, s25, 0")
    srd(a,52,24,25,16<<20)
    def stage_ops(t):
        slot=t%3
        ops=[]
        def setup():
            a("s_add_u32 s63, s35, %d"%t)
            a("s_and_b32 s63, s63, 7")
            a("s_lshl_b32 s67, s63, 7")
            a("s_add_u32 s64, s56, s67")
            a("s_lshl_b32 s67, s63, 19")
            a("s_add_u32 s65, s57, s67")
        def mk(j):
            def f():
                if j==0:
                    setup()
                    a("s_add_u32 m0, s60, %d"%(slot*16384))
                    a("s_nop 0")
                if j==2:
                    a("s_add_u32 m0, s59, %d"%(slot*4096))
                    a("s_nop 0")
                if NOLOAD: return
                if j<2 and NOW: return
                if j>=2 and NOX: return
                if j<2:
                    a.vmem("buffer_load_dwordx4 v%d, s[40:43], s65 offen offset:%d %s lds"%(VWD+j,1024*j,XWF),("st",t))
                else:
                    a.vmem("buffer_load_dwordx4 v%d, s[36:39], s64 offen offset:%d %s lds"%(VXD+j-2,1024*(j-2),XWF),("st",t))
            return f
        return [mk(j) for j in range(6)]
    a("s_add_u32 s69, s30, s31")
    a("s_and_b32 s69, s69, 1")
    vmq={0:[],1:[]}
    def vm_all(txt,tag):
        a(txt); vmq[0].append(tag); vmq[1].append(tag)
    a.vmem=lambda txt,tag=None: vm_all(txt,tag)
    def wait_vm_cls(tags):
        if not isinstance(tags,list): tags=[tags]
        ns={}
        for c in (0,1):
            last=-1
            for i,tg in enumerate(vmq[c]):
                if tg in tags: last=i
            if last<0: ns[c]=None
            else:
                ns[c]=len(vmq[c])-1-last
                vmq[c]=vmq[c][last+1:]
        if ns[0] is None and ns[1] is None: return
        if ns[0]==ns[1]:
            a("s_waitcnt vmcnt(%d)"%ns[0]); return
        L1=a.newlabel("Lw"); L2=a.newlabel("Lw")
        a("s_cmp_eq_u32 s69, 0")
        a("s_cbranch_scc1 %s"%L1)
        if ns[1] is not None: a("s_waitcnt vmcnt(%d)"%ns[1])
        a("s_branch %s"%L2)
        a.label(L1)
        if ns[0] is not None: a("s_waitcnt vmcnt(%d)"%ns[0])
        a.label(L2)
    def kv_batch(q,cls):
        if NOLOAD or NOKV: return
        L=a.newlabel("Lkv")
        a("s_cmp_eq_u32 s69, %d"%cls)
        a("s_cbranch_scc0 %s"%L)
        isv=q>=2
        for j in range(4):
            jj=(q%2)*4+j
            dst=(VR if isv else KR)+4*jj
            sx="s[48:51]" if isv else "s[44:47]"
            so="s62" if jj>=4 else "s61"
            a("buffer_load_dwordx4 v[%d:%d], v%d, %s, %s offen offset:%d %s"%(dst,dst+3,VL16,sx,so,1024*j,KVNT))
            vmq[cls].append("V" if isv else "K")
        a.label(L)
    def kv_at(t):
        for cls,sched in ((0,KVA),(1,KVB)):
            for q,tt in enumerate(sched):
                if tt==t: kv_batch(q,cls)
    for f in stage_ops(0): f()
    if PBAR: a("s_barrier")
    for f in stage_ops(1): f()
    if PBAR: a("s_barrier")
    kv_at(-1)
    stamp(a,2,0)
    for i in range(64): a("v_mov_b32 v%d, 0"%(ACC+i))
    for t in range(8):
        slot=t%3
        wait_vm_cls(("st",t))
        if t==0: stamp(a,3,0)
        a("s_barrier")
        if t==0: stamp(a,4,0)
        pend=[]
        if KVPOS=="before": kv_at(t)
        if t+2<8:
            pend=stage_ops(t+2)
        if KVPOS=="after": pend=pend+[lambda t=t: kv_at(t)]
        if not ILV:
            for f in pend: f()
            pend=[]
        def rdA(s,tt):
            if NOCOMP: return
            for i in range(2):
                a.ds("ds_read_b64_tr_b16 v[%d:%d], v%d offset:%d"%(AF+4*tt+2*i,AF+4*tt+2*i+1,VWA+tt,slot*16384+s*4096+i*1024),("A",s,tt))
        def rdB(s):
            if NOCOMP: return
            a.ds("ds_read_b128 v[%d:%d], v%d offset:%d"%(BF+4*s,BF+4*s+3,VXA+s,slot*4096),("B",s))
        rdB(0); rdA(0,0); rdA(0,1); rdA(0,2); rdA(0,3); rdB(1); rdB(2); rdB(3)
        n=0
        for s in range(4):
            for tt in range(4):
                a.wait_lgkm([("A",s,tt),("B",s)])
                if not NOCOMP:
                    a("v_mfma_f32_32x32x16_bf16 v[%d:%d], v[%d:%d], v[%d:%d], v[%d:%d]"%(ACC+16*tt,ACC+16*tt+15,AF+4*tt,AF+4*tt+3,BF+4*s,BF+4*s+3,ACC+16*tt,ACC+16*tt+15))
                if s<3: rdA(s+1,tt)
                n+=1
                if pend and n%2==0:
                    pend.pop(0)()
        for f in pend: f()
    stamp(a,5,0)
    wait_vm_cls("K")
    for j in range(8):
        a("v_xor_b32 v%d, %d, v%d"%(VT0+(j%2),(j%4)<<6,VKW))
        a.ds("ds_write_b128 v%d, v[%d:%d] offset:%d"%(VT0+(j%2),KR+4*j,KR+4*j+3,j*1024),"KW")
    a("s_nop 7")
    for t in range(4):
        for i in range(8):
            a("v_cvt_pk_bf16_f32 v%d, v%d, v%d"%(QF+8*t+i,ACC+16*t+2*i,ACC+16*t+2*i+1))
    a.wait_lgkm0()
    for s in range(8):
        a("v_xor_b32 v%d, %d, v%d"%(VT0+(s%2),32*s,VKA))
        a.ds("ds_read_b128 v[%d:%d], v%d"%(KR+4*s,KR+4*s+3,VT0+(s%2)),("KF",s))
    for s in range(8):
        a.wait_lgkm(("KF",s))
        a("v_mfma_f32_32x32x16_bf16 v[%d:%d], v[%d:%d], v[%d:%d], %s"%(SA,SA+15,KR+4*s,KR+4*s+3,QF+4*s,QF+4*s+3,"0" if s==0 else "v[%d:%d]"%(SA,SA+15)))
    stamp(a,6,0)
    a("s_waitcnt vmcnt(0)")
    a.vmem=lambda txt,tag=None: a(txt)
    for j in range(8):
        a.ds("ds_write_b128 v%d, v[%d:%d] offset:%d"%(VVW,VR+4*j,VR+4*j+3,j*1024),"VW")
    a("s_nop 7")
    M=TM; T1=TM+1; T2=TM+2; SUM=TM+3
    a("v_max3_f32 v%d, v%d, v%d, v%d"%(M,SA,SA+1,SA+2))
    for i in range(3,15,2):
        a("v_max3_f32 v%d, v%d, v%d, v%d"%(M,M,SA+i,SA+i+1))
    a("v_max_f32 v%d, v%d, v%d"%(M,M,SA+15))
    a("v_mov_b32 v%d, v%d"%(T1,M))
    a("s_nop 1")
    a("v_permlane32_swap_b32 v%d, v%d"%(M,T1))
    a("s_nop 1")
    a("v_max_f32 v%d, v%d, v%d"%(M,M,T1))
    a("s_mov_b32 s68, 0x%x"%f2u(SCALE_LOG2E))
    a("v_mul_f32 v%d, s68, v%d"%(M,M))
    for i in range(16):
        a("v_fma_f32 v%d, v%d, s68, -v%d"%(SA+i,SA+i,M))
    for i in range(16):
        a("v_exp_f32 v%d, v%d"%(SA+i,SA+i))
    a("s_nop 0")
    a("v_add_f32 v%d, v%d, v%d"%(SUM,SA,SA+1))
    for i in range(2,16):
        a("v_add_f32 v%d, v%d, v%d"%(SUM,SUM,SA+i))
    a("v_mov_b32 v%d, v%d"%(T1,SUM))
    a("s_nop 1")
    a("v_permlane32_swap_b32 v%d, v%d"%(SUM,T1))
    a("s_nop 1")
    a("v_add_f32 v%d, v%d, v%d"%(SUM,SUM,T1))
    a("v_rcp_f32 v%d, v%d"%(SUM,SUM))
    a("s_nop 0")
    for i in range(16):
        a("v_mul_f32 v%d, v%d, v%d"%(SA+i,SA+i,SUM))
    for i in range(8):
        a("v_cvt_pk_bf16_f32 v%d, v%d, v%d"%(KR+i,SA+2*i,SA+2*i+1))
    PF=KR
    a.wait_lgkm0()
    def rdV(t,u):
        for i in range(2):
            a.ds("ds_read_b64_tr_b16 v[%d:%d], v%d offset:%d"%(QF+16*u+4*t+2*i,QF+16*u+4*t+2*i+1,VVA+t,u*4096+i*1024),("VF",t,u))
    for t in range(4): rdV(t,0)
    for t in range(3): rdV(t,1)
    for u in range(2):
        for t in range(4):
            a.wait_lgkm(("VF",t,u))
            a("v_mfma_f32_32x32x16_bf16 v[%d:%d], v[%d:%d], v[%d:%d], %s"%(ACC+16*t,ACC+16*t+15,QF+16*u+4*t,QF+16*u+4*t+3,PF+4*u,PF+4*u+3,"0" if u==0 else "v[%d:%d]"%(ACC+16*t,ACC+16*t+15)))
            if u==0 and t==0: rdV(3,1)
    a("s_nop 7")
    a("s_nop 3")
    a("s_lshl_b32 s63, s26, 5")
    a("s_add_u32 s63, s63, s34")
    a("s_lshl_b32 s63, s63, 6")
    a("s_lshl_b32 s64, s30, 3")
    a("s_add_u32 s63, s63, s64")
    a("s_lshl_b32 s63, s63, 10")
    a("s_add_u32 s64, s63, 4096")
    for t in range(4):
        for i in range(8):
            a("v_cvt_pk_bf16_f32 v%d, v%d, v%d"%(VR+8*t+i,ACC+16*t+2*i,ACC+16*t+2*i+1))
        for u in range(2):
            ks=2*t+u
            a.vmem("buffer_store_dwordx4 v[%d:%d], v%d, s[52:55], %s offen offset:%d %s"%(VR+8*t+4*u,VR+8*t+4*u+3,VL16,"s64" if ks>=4 else "s63",1024*(ks%4),OST))
    L=a.newlabel("Lz")
    a("s_cmp_lg_u32 s33, 0")
    a("s_cbranch_scc1 %s"%L)
    a("s_add_u32 s24, s24, %d"%(WS_FLAG-WS_O))
    a("s_addc_u32 s25, s25, 0")
    srd(a,56,24,25,4096)
    a("v_mov_b32 v4, 0\nv_mov_b32 v5, 0\nv_mov_b32 v6, 0\nv_mov_b32 v7, 0")
    a("s_lshl_b32 s63, s2, 4")
    a("v_mov_b32 v8, 0")
    a("v_cmp_eq_u32 vcc, 0, v0")
    a("s_and_saveexec_b64 s[60:61], vcc")
    a("s_cbranch_execz %s"%L)
    a("buffer_store_dwordx4 v[4:7], v8, s[56:59], s63 offen")
    a("s_mov_b64 exec, s[60:61]")
    a.label(L)
    if STAMP:
        a("s_waitcnt vmcnt(0)")
        stamp(a,7,0)
        a("s_getreg_b32 s96, hwreg(HW_REG_XCC_ID)")
        a("s_mov_b32 s97, 0")
        stamp_flush(a,9,0)
    a.label(END)
    a("s_endpgm")

def gen_k2(a):
    kernel_header(a,"k2_kernel")
    a.lgkm=[]; a.vm=[]
    del a.vmem
    END="K2_END"
    a("s_cmp_ge_u32 s2, 256")
    a("s_cbranch_scc1 %s"%END)
    stamp(a,0,1)
    a("s_load_dwordx2 s[8:9], s[0:1], 32")
    a("s_load_dwordx2 s[10:11], s[0:1], 72")
    a("s_load_dwordx2 s[12:13], s[0:1], 80")
    a("s_load_dwordx2 s[24:25], s[0:1], 96")
    common_decode(a)
    a("s_and_b32 s30, s27, 7")
    a("s_lshr_b32 s31, s27, 3")
    a("s_and_b32 s32, s33, 3")
    a("s_lshr_b32 s34, s33, 2")
    if ROT:
        a("s_lshl_b32 s35, s31, 1")
        a("s_add_u32 s35, s35, s30")
        a("s_and_b32 s35, s35, 7")
    else:
        a("s_mov_b32 s35, 0")
    V_L=2; VWA=4; VWD=8; VL16=12; VT0=20; VT1=21; VT2=22
    ACC=64; AF=128; BF=144
    RX=176
    a("v_lshrrev_b32 v%d, 4, v%d"%(VT0,V_L))
    a("v_lshlrev_b32 v%d, 2, v%d"%(VT1,VT0))
    a("v_and_b32 v%d, 15, v%d"%(VT2,V_L))
    a("v_xor_b32 v%d, v%d, v%d"%(VT2,VT2,VT1))
    a("v_lshlrev_b32 v%d, 4, v%d"%(VT2,VT2))
    a("v_lshl_add_u32 v%d, v%d, 10, v%d"%(VWD,VT0,VT2))
    for j in range(1,4):
        a("v_add_u32 v%d, %d, v%d"%(VWD+j,3072*j,VWD))
    a("v_lshlrev_b32 v%d, 4, v%d"%(VL16,V_L))
    tr_pattern(a,VWA,V_L,VT0,VT1,VT2)
    a("s_lshl_b32 s67, s34, 14")
    for t in range(4):
        a("v_add_u32 v%d, s67, v%d"%(VWA+t,VWA+t))
    a("s_lshl_b32 s56, s29, 10")
    a("s_lshl_b32 s57, s34, 9")
    a("s_add_u32 s56, s56, s57")
    a("s_lshl_b32 s57, s32, 4")
    a("s_add_u32 s56, s56, s57")
    a("s_lshl_b32 s56, s56, 10")
    a("s_lshl_b32 s57, s31, 8")
    a("s_add_u32 s56, s56, s57")
    a("s_lshl_b32 s57, s26, 5")
    a("s_lshl_b32 s58, s30, 2")
    a("s_add_u32 s57, s57, s58")
    a("s_add_u32 s57, s57, s32")
    a("s_lshl_b32 s57, s57, 6")
    a("s_lshl_b32 s58, s34, 5")
    a("s_add_u32 s57, s57, s58")
    a("s_lshl_b32 s57, s57, 10")
    a("s_lshl_b32 s60, s33, 12")
    a("s_waitcnt lgkmcnt(0)")
    a("s_cmp_eq_u32 s28, 0")
    a("s_cselect_b32 s8, s8, s10")
    a("s_cselect_b32 s9, s9, s11")
    srd(a,40,8,9,4<<20)
    a("s_add_u32 s14, s24, %d"%WS_O)
    a("s_addc_u32 s15, s25, 0")
    srd(a,52,14,15,16<<20)
    a("s_add_u32 s14, s24, %d"%WS_EX)
    a("s_addc_u32 s15, s25, 0")
    srd(a,44,14,15,16<<20)
    a("s_add_u32 s14, s24, %d"%WS_FLAG)
    a("s_addc_u32 s15, s25, 0")
    srd(a,48,14,15,4096)
    srd(a,36,12,13,2<<20)
    def chunk(t):
        a("s_add_u32 s63, s35, %d"%t)
        a("s_and_b32 s63, s63, 7")
    def issue_w(t):
        slot=t%4
        chunk(t)
        a("s_lshl_b32 s67, s63, 16")
        a("s_add_u32 s65, s56, s67")
        a("s_add_u32 m0, s60, %d"%(slot*32768))
        a("s_nop 0")
        for j in range(4):
            a.vmem("buffer_load_dwordx4 v%d, s[40:43], s65 offen offset:%d %s lds"%(VWD+j,1024*j,WOF),("st",t))
    def issue_b(t):
        chunk(t)
        a("s_lshl_b32 s67, s63, 12")
        a("s_add_u32 s64, s57, s67")
        for s in range(4):
            d=BF+16*(t%2)+4*s
            a.vmem("buffer_load_dwordx4 v[%d:%d], v%d, s[52:55], s64 offen offset:%d"%(d,d+3,VL16,1024*s),("B",t,s))
    issue_w(0); issue_b(0); issue_w(1); issue_b(1); issue_w(2)
    for i in range(64): a("v_mov_b32 v%d, 0"%(ACC+i))
    stamp(a,1,1)
    for t in range(8):
        slot=t%4
        a.wait_vm([("st",t),("B",t,0),("B",t,1),("B",t,2),("B",t,3)])
        a("s_barrier")
        if t==0: stamp(a,2,1)
        if t+3<8: issue_w(t+3)
        def rdA(s,tt):
            for i in range(2):
                a.ds("ds_read_b64_tr_b16 v[%d:%d], v%d offset:%d"%(AF+4*tt+2*i,AF+4*tt+2*i+1,VWA+tt,(slot%2)*32768+s*4096+i*1024),("A",s,tt))
        if slot==2 or (slot==0 and t>0):
            for tt in range(4):
                a("v_xor_b32 v%d, 0x10000, v%d"%(VWA+tt,VWA+tt))
        rdA(0,0); rdA(0,1); rdA(0,2); rdA(0,3)
        for s in range(4):
            for tt in range(4):
                a.wait_lgkm([("A",s,tt)])
                b=BF+16*(t%2)+4*s
                a("v_mfma_f32_32x32x16_bf16 v[%d:%d], v[%d:%d], v[%d:%d], v[%d:%d]"%(ACC+16*tt,ACC+16*tt+15,AF+4*tt,AF+4*tt+3,b,b+3,ACC+16*tt,ACC+16*tt+15))
                if s<3: rdA(s+1,tt)
        if t+2<8: issue_b(t+2)
    stamp(a,3,1)
    a("s_barrier")
    a("s_nop 7")
    a("s_nop 3")
    a("s_lshl_b32 s63, s33, 13")
    a("v_add_u32 v%d, s63, v%d"%(VT0,VL16))
    a("s_xor_b32 s64, s63, 0x8000")
    a("v_add_u32 v%d, s64, v%d"%(VT1,VL16))
    Lk1=a.newlabel("Lkh1"); Lj=a.newlabel("Lkhj")
    a("s_cmp_eq_u32 s34, 0")
    a("s_cbranch_scc0 %s"%Lk1)
    KEEP=RX
    def xchg(send,keep):
        for i in range(8):
            a("ds_write_b128 v%d, v[%d:%d] offset:%d"%(VT0,send+4*i,send+4*i+3,1024*i))
        for i in range(32):
            a("v_mov_b32 v%d, v%d"%(KEEP+i,keep+i))
    xchg(ACC+32,ACC)
    a("s_branch %s"%Lj)
    a.label(Lk1)
    xchg(ACC,ACC+32)
    a.label(Lj)
    a("s_waitcnt lgkmcnt(0)")
    a("s_barrier")
    for i in range(8):
        a("ds_read_b128 v[%d:%d], v%d offset:%d"%(ACC+4*i,ACC+4*i+3,VT1,1024*i))
    a("s_waitcnt lgkmcnt(0)")
    for i in range(32):
        a("v_add_f32 v%d, v%d, v%d"%(KEEP+i,KEEP+i,ACC+i))
    stamp(a,4,1)
    a("s_lshl_b32 s63, s28, 3")
    a("s_add_u32 s63, s63, s30")
    a("s_lshl_b32 s63, s63, 2")
    a("s_add_u32 s63, s63, s31")
    Lrecv=a.newlabel("Lrecv"); Lsent=a.newlabel("Lsent")
    a("s_cmp_eq_u32 s32, s29")
    a("s_cbranch_scc1 %s"%Lsent)
    a("s_lshl_b32 s64, s63, 2")
    a("s_add_u32 s64, s64, s32")
    a("s_lshl_b32 s64, s64, 2")
    a("s_add_u32 s64, s64, s29")
    a("s_lshl_b32 s64, s64, 1")
    a("s_add_u32 s64, s64, s34")
    a("s_lshl_b32 s64, s64, 13")
    a("s_add_u32 s65, s64, 4096")
    for i in range(8):
        a("buffer_store_dwordx4 v[%d:%d], v%d, s[44:47], %s offen offset:%d sc1"%(KEEP+4*i,KEEP+4*i+3,VL16,"s65" if i>=4 else "s64",1024*(i%4)))
    a("s_waitcnt vmcnt(0)")
    a.label(Lsent)
    a("s_barrier")
    Lf=a.newlabel("Lf")
    a("s_cmp_lg_u32 s33, 0")
    a("s_cbranch_scc1 %s"%Lf)
    a("s_lshl_b32 s64, s63, 6")
    a("s_lshl_b32 s65, s29, 2")
    a("s_add_u32 s64, s64, s65")
    a("v_lshlrev_b32 v%d, 4, v%d"%(VT0,V_L))
    a("v_mov_b32 v%d, 1"%VT1)
    a("v_cmp_gt_u32 vcc, 4, v%d"%V_L)
    a("s_and_saveexec_b64 s[70:71], vcc")
    a("buffer_store_dword v%d, v%d, s[48:51], s64 offen sc1"%(VT1,VT0))
    a("s_mov_b64 exec, s[70:71]")
    a.label(Lf)
    stamp(a,5,1)
    a("s_cmp_eq_u32 s32, s29")
    a("s_cbranch_scc0 K2_FIN")
    a("s_lshl_b32 s64, s63, 6")
    a("s_lshl_b32 s65, s29, 4")
    a("s_add_u32 s64, s64, s65")
    a("v_mov_b32 v%d, 0"%VT0)
    Lp=a.newlabel("Lpoll")
    a.label(Lp)
    a("buffer_load_dwordx4 v[24:27], v%d, s[48:51], s64 offen sc1"%VT0)
    a("s_waitcnt vmcnt(0)")
    a("v_and_b32 v24, v24, v25")
    a("v_and_b32 v26, v26, v27")
    a("v_and_b32 v24, v24, v26")
    a("s_nop 0")
    a("v_readfirstlane_b32 s66, v24")
    a("s_cmp_eq_u32 s66, 1")
    a("s_cbranch_scc0 %s"%Lp)
    for q in range(1,4):
        a("s_add_u32 s66, s29, %d"%q)
        a("s_and_b32 s66, s66, 3")
        a("s_lshl_b32 s64, s63, 2")
        a("s_add_u32 s64, s64, s29")
        a("s_lshl_b32 s64, s64, 2")
        a("s_add_u32 s64, s64, s66")
        a("s_lshl_b32 s64, s64, 1")
        a("s_add_u32 s64, s64, s34")
        a("s_lshl_b32 s64, s64, 13")
        a("s_add_u32 s65, s64, 4096")
        base=64+32*(q-1)
        for i in range(8):
            a("buffer_load_dwordx4 v[%d:%d], v%d, s[44:47], %s offen offset:%d sc1"%(base+4*i,base+4*i+3,VL16,"s65" if i>=4 else "s64",1024*(i%4)))
    a("s_waitcnt vmcnt(16)")
    for i in range(32): a("v_add_f32 v%d, v%d, v%d"%(KEEP+i,KEEP+i,64+i))
    a("s_waitcnt vmcnt(8)")
    for i in range(32): a("v_add_f32 v%d, v%d, v%d"%(KEEP+i,KEEP+i,96+i))
    a("s_waitcnt vmcnt(0)")
    for i in range(32): a("v_add_f32 v%d, v%d, v%d"%(KEEP+i,KEEP+i,128+i))
    for i in range(16):
        a("v_cvt_pk_bf16_f32 v%d, v%d, v%d"%(64+i,KEEP+2*i,KEEP+2*i+1))
    a("v_and_b32 v%d, 31, v%d"%(VT0,V_L))
    a("v_lshlrev_b32 v%d, 11, v%d"%(VT0,VT0))
    a("v_lshrrev_b32 v%d, 5, v%d"%(VT1,V_L))
    a("v_lshl_add_u32 v%d, v%d, 4, v%d"%(VT0,VT1,VT0))
    a("s_lshl_b32 s64, s30, 2")
    a("s_add_u32 s64, s64, s32")
    a("s_lshl_b32 s64, s64, 16")
    a("s_lshl_b32 s65, s28, 10")
    a("s_add_u32 s64, s64, s65")
    a("s_lshl_b32 s65, s31, 8")
    a("s_add_u32 s64, s64, s65")
    a("s_lshl_b32 s65, s34, 7")
    a("s_add_u32 s64, s64, s65")
    for q in range(4):
        a("buffer_store_dwordx4 v[%d:%d], v%d, s[36:39], s64 offen offset:%d"%(64+4*q,64+4*q+3,VT0,32*q))
    a.label("K2_FIN")
    if STAMP:
        a("s_waitcnt vmcnt(0)")
        stamp(a,6,1)
        stamp_flush(a,7,1)
    a.label(END)
    a("s_endpgm")

def main():
    a=Asm()
    a.raw("; @launch kernel=k1_kernel grid=(256,1,1) block=(512,1,1) lds=147456")
    a.raw("; @launch kernel=k2_kernel grid=(256,1,1) block=(512,1,1) lds=131072")
    a.raw('.amdgcn_target "amdgcn-amd-amdhsa--gfx950"')
    a.raw(".text")
    gen_k1(a)
    gen_k2(a)
    a.raw('.section .rodata,"a"')
    a.raw(kernel_desc("k1_kernel",256,100))
    a.raw(kernel_desc("k2_kernel",256,96))
    open(sys.argv[1],"w").write(a.text())
main()
```

```python
import sys, struct
from asmlib import *

OPT=dict(a.split("=") for a in sys.argv[2:]) if len(sys.argv)>2 else {}
def O(k,d): return OPT.get(k,d)
STAMP=int(O("stamp",0)); KVF=O("kvf","nt"); XWF=O("xwf",""); WOF=O("wof",""); PRIO=int(O("prio",2))
OST=O("ost","sc1"); FL1=O("fl1","sc1"); OLF=O("olf","sc1"); WOPF=int(O("wopf",1)); TLBW=int(O("tlbw",1))
SCHED=O("sched","0123"); EXB=int(O("exb",1)); P2D=int(O("p2d",2)); OUTF=O("outf",""); SLP=int(O("slp",0))
FLQ=int(O("flq",0))
DBGST=int(O("dbgst",0))
SCHEDB=O("schedb","")
SENT=int(O("sent",0)); SKKV=O("skkv",""); SKXW=int(O("skxw",0)); PRO=int(O("pro",0)); WF0=O("wf0",""); WN0=int(O("wn0",1)); WOF01=O("wof01",""); FLQD=0; EXS=O("exs","sc1"); EXL=O("exl","sc1"); P1NOMM=int(O("p1nomm",0)); VEARLY=int(O("vearly",1))
XWF0=O("xwf0",""); XWN0=int(O("xwn0",2)); WOPFF=O("wopff","")
KNAME="concat_heads__mha_block_cached__gqa_block_cached__near_ridge_kernel"
WSB=int(O("wsb",0))<<20
WS_O=WSB; WS_EX=WSB+(16<<20); WS_FLAG=WSB+(32<<20) if WSB+(33<<20)<=(256<<20) else WSB-(2<<20); WS_STAMP=200<<20; F3OFF=32768
SCALE_LOG2E=0.08838834764831845*1.4426950408889634
def f2u(f): return struct.unpack("<I",struct.pack("<f",f))[0]
WOS=[65536,81920,98304,114688]; OS=[0,16384,32768,49152]
SX,SW,SK,SV,SO,SWO,SEX,SFL,SOUT,SDBG=36,40,44,48,52,56,60,64,68,76
def S4(b): return "s[%d:%d]"%(b,b+3)
ST0=86
CS=O("cs","start,q_end,o_st,c0,p2_end,sent,polled,fin").split(",")
PS=O("ps","start,p_init,xw0,b7,b10,flags,pre_c3,p_end").split(",")
def stamp(a,name,role):
    if not STAMP: return
    lst=CS if role=="c" else PS
    if "m_"+name in lst:
        idx=lst.index("m_"+name)
        a("s_memtime s[%d:%d]"%(ST0+2*idx,ST0+2*idx+1))
    if name not in lst: return
    idx=lst.index(name)
    a("%s s[%d:%d]"%("s_memtime" if STAMP==2 else "s_memrealtime",ST0+2*idx,ST0+2*idx+1))
def stamp_flush(a,n,role):
    if not STAMP: return
    L=a.newlabel("Lst")
    a("s_waitcnt lgkmcnt(0)")
    if DBGST:
        if role!="c": return
        a("v_and_b32 v2, 63, v0\nv_cmp_eq_u32 vcc, 0, v2\ns_and_saveexec_b64 s[80:81], vcc\ns_cbranch_execz %s"%L)
        for i in range(1,n):
            a("s_sub_u32 s82, s%d, s84\ns_max_i32 s82, s82, 0\ns_min_u32 s82, s82, 100000\nv_mov_b32 v1, s82\nv_mov_b32 v3, %d"%(ST0+2*i,4*(1+i)))
            a("buffer_atomic_umax v1, v3, %s, 0 offen"%S4(SDBG))
            a("v_mov_b32 v4, %d"%(4*(8+i)))
            a("buffer_atomic_add v1, v4, %s, 0 offen\ns_nop 1"%S4(SDBG))
        a.label(L); return
    a("s_load_dwordx2 s[82:83], s[0:1], 96")
    a("s_waitcnt lgkmcnt(0)")
    a("s_add_u32 s82, s82, %d\ns_addc_u32 s83, s83, 0"%WS_STAMP)
    a("s_lshl_b32 s80, s2, 4\ns_add_u32 s80, s80, s33\ns_lshl_b32 s80, s80, 7")
    a("v_mov_b32 v1, s80\nv_and_b32 v2, 63, v0\nv_cmp_eq_u32 vcc, 0, v2\ns_and_saveexec_b64 s[80:81], vcc\ns_cbranch_execz %s"%L)
    for i in range(n):
        a("v_mov_b32 v2, s%d\nv_mov_b32 v3, s%d\nglobal_store_dwordx2 v1, v[2:3], s[82:83] offset:%d\ns_nop 1"%(ST0+2*i,ST0+1+2*i,8*i))
    a.label(L)

def srd(a,base,lo,hi,size):
    a("s_mov_b32 s%d, s%d\ns_mov_b32 s%d, s%d\ns_mov_b32 s%d, 0x%x\ns_mov_b32 s%d, 0x00020000"%(base,lo,base+1,hi,base+2,size,base+3))
def ws_srd(a,base,off,size):
    a("s_add_u32 s80, s24, %d\ns_addc_u32 s81, s25, 0"%off)
    srd(a,base,80,81,size)
def tr_base(a,vdst,vlane,t0,t2):
    a("v_bfe_u32 v%d, v%d, 2, 2"%(t0,vlane))
    a("v_bfe_u32 v%d, v%d, 4, 1"%(vdst,vlane))
    a("v_lshlrev_b32 v%d, 2, v%d"%(vdst,vdst))
    a("v_and_b32 v%d, 1, v%d"%(t2,vlane))
    a("v_lshl_add_u32 v%d, v%d, 1, v%d"%(vdst,t2,vdst))
    a("v_bfe_u32 v%d, v%d, 1, 1"%(t2,vlane))
    a("v_add_u32 v%d, v%d, v%d"%(vdst,vdst,t2))
    a("v_lshlrev_b32 v%d, 3, v%d"%(vdst,vdst))
    a("v_lshrrev_b32 v%d, 5, v%d"%(t2,vlane))
    a("v_lshl_add_u32 v%d, v%d, 3, v%d"%(t2,t2,t0))
    a("v_lshl_add_u32 v%d, v%d, 8, v%d"%(vdst,t2,vdst))
MF="v_mfma_f32_32x32x16_bf16"
def mfma(a,d,x,y,zero=False):
    a("%s v[%d:%d], v[%d:%d], v[%d:%d], %s"%(MF,d,d+15,x,x+3,y,y+3,"0" if zero else "v[%d:%d]"%(d,d+15)))
def nonce_issue(a,vt):
    a("v_mov_b32 v%d, 0"%vt)
    a.vmem("buffer_load_dwordx2 v[%d:%d], v%d, %s, 0 offen sc1"%(vt+2,vt+3,vt,S4(SDBG)),"nonce")
def nonce_finish(a,vt):
    L=a.newlabel("Lnonce"); L2=a.newlabel("Lnonce")
    a.label(L)
    a("v_readfirstlane_b32 s84, v%d\nv_readfirstlane_b32 s85, v%d\ns_nop 3"%(vt+2,vt+3))
    a("s_cmp_lg_u32 s84, 0\ns_cbranch_scc1 %s"%L2)
    a("buffer_load_dwordx2 v[%d:%d], v%d, %s, 0 offen sc1\ns_waitcnt vmcnt(0)\ns_branch %s"%(vt+2,vt+3,vt,S4(SDBG),L))
    a.label(L2)
def flag_store(a,soff,flags):
    a("v_mov_b32 v26, s84\nv_mov_b32 v27, s85\nv_mov_b32 v24, 0")
    a("s_mov_b64 exec, 1")
    a("buffer_store_dwordx2 v[26:27], v24, %s, %s offen %s"%(S4(SFL),soff,flags))
    a("s_mov_b64 exec, -1")

def gen(a):
    kernel_header(a,KNAME)
    a("s_cmp_ge_u32 s2, 256")
    a("s_cbranch_scc1 K_END")
    if STAMP: a("%s s[%d:%d]"%("s_memtime" if STAMP==2 else "s_memrealtime",ST0,ST0+1))
    a("s_load_dwordx8 s[8:15], s[0:1], 0")
    a("s_load_dwordx8 s[16:23], s[0:1], 40")
    a("s_load_dwordx2 s[24:25], s[0:1], 96")
    a("s_load_dwordx2 s[72:73], s[0:1], 32")
    a("s_load_dwordx2 s[74:75], s[0:1], 72")
    a("s_load_dwordx4 s[4:7], s[0:1], 80")
    a("s_and_b32 s26, s2, 7\ns_lshr_b32 s27, s2, 3\ns_lshr_b32 s28, s26, 2\ns_and_b32 s29, s26, 3")
    a("v_lshrrev_b32 v1, 6, v0\nv_and_b32 v2, 63, v0\ns_nop 0\nv_readfirstlane_b32 s33, v1")
    a("s_and_b32 s30, s27, 7")
    a("s_lshr_b32 s31, s27, 3")
    a("s_lshl_b32 s35, s31, 1\ns_add_u32 s35, s35, s30\ns_and_b32 s35, s35, 7")
    a("v_lshlrev_b32 v3, 4, v2")
    a("s_cmp_ge_u32 s33, 8")
    a("s_cbranch_scc1 PRODUCER")
    consumer(a)
    a.label("PRODUCER")
    producer(a)
    a.label("K_END")
    a("s_endpgm")

def producer(a):
    a.lgkm=[]; a.vm=[]
    VL=2; VL16=3; VXD=4; VWD=8; VOD=12; VKW=16; VVW=17; VT0=20; VT1=21; VT2=22; VT3=23; RAW=32
    a("s_sub_u32 s34, s33, 8")
    if PRIO: a("s_setprio %d"%PRIO)
    a("v_lshrrev_b32 v%d, 3, v%d"%(VT0,VL))
    a("v_bfe_u32 v%d, v%d, 4, 1"%(VT1,VL))
    a("v_lshlrev_b32 v%d, 2, v%d"%(VT1,VT1))
    a("v_and_b32 v%d, 7, v%d"%(VT2,VL))
    a("v_xor_b32 v%d, v%d, v%d"%(VT2,VT2,VT1))
    a("v_lshlrev_b32 v%d, 12, v%d"%(VT0,VT0))
    for j in range(4):
        a("v_xor_b32 v%d, %d, v%d"%(VT3,j,VT2))
        a("v_lshl_add_u32 v%d, v%d, 4, v%d"%(VXD+j,VT3,VT0))
    a("v_lshrrev_b32 v%d, 4, v%d"%(VT0,VL))
    a("v_lshlrev_b32 v%d, 2, v%d"%(VT1,VT0))
    a("v_and_b32 v%d, 15, v%d"%(VT2,VL))
    a("v_xor_b32 v%d, v%d, v%d"%(VT2,VT2,VT1))
    a("v_lshlrev_b32 v%d, 4, v%d"%(VT2,VT2))
    a("v_lshl_add_u32 v%d, v%d, 13, v%d"%(VWD,VT0,VT2))
    for j in range(1,4): a("v_add_u32 v%d, %d, v%d"%(VWD+j,j*(4*8192-1024),VWD))
    a("s_lshl_b32 s3, s30, 2\ns_add_u32 s3, s3, s34")
    a("s_lshl_b32 s32, s3, 5")
    a("s_lshl_b32 s3, s3, 15")
    a("s_lshl_b32 s80, s29, 3\ns_lshl_b32 s81, s31, 1\ns_add_u32 s80, s80, s81")
    a("s_add_u32 s32, s32, s80\ns_lshl_b32 s32, s32, 13")
    a("s_lshr_b32 s81, s34, 1\ns_add_u32 s80, s80, s81\ns_lshl_b32 s80, s80, 8")
    a("s_and_b32 s27, s34, 1\ns_lshl_b32 s27, s27, 18\ns_add_u32 s27, s27, s80")
    a("s_waitcnt lgkmcnt(0)")
    a("s_cmp_eq_u32 s28, 0")
    for i in (0,1,6,7): a("s_cselect_b32 s%d, s%d, s%d"%(8+i,8+i,16+i))
    srd(a,SX,8,9,1<<20); srd(a,SW,14,15,4<<20)
    a("s_lshl_b32 s9, s34, 12")
    a("s_lshl_b32 s8, s34, 13")
    stamp(a,"p_init","p")
    def xw(t,part="wx"):
        if SKXW and t>=2: return
        slot=t%3
        XWF=XWF0 if t<XWN0 else O("xwf","")
        XF=XWF
        if WF0 and t<WN0: XWF=WF0
        a("s_add_u32 s80, s35, %d\ns_and_b32 s80, s80, 7"%t)
        if "w" in part:
            a("s_lshl_b32 s81, s80, 19\ns_add_u32 s81, s81, s27")
            a("s_add_u32 m0, s8, %d"%(slot*49152+16384))
            a("s_nop 0")
            for j in range(4): a.vmem("buffer_load_dwordx4 v%d, %s, s81 offen offset:%d %s lds"%(VWD+j,S4(SW),1024*j,XWF),("xw",t))
            a("s_add_u32 m0, s8, %d"%(slot*49152+16384+4096))
            a("s_add_u32 s81, s81, %d"%(16*8192))
            for j in range(4): a.vmem("buffer_load_dwordx4 v%d, %s, s81 offen offset:%d %s lds"%(VWD+j,S4(SW),1024*j,XWF),("xw",t))
        if "x" in part:
            a("s_add_u32 m0, s9, %d"%(slot*49152))
            a("s_lshl_b32 s80, s80, 7\ns_add_u32 s80, s80, s3")
            for j in range(4): a.vmem("buffer_load_dwordx4 v%d, %s, s80 offen offset:%d %s lds"%(VXD+j,S4(SX),1024*j,XF),("xw",t))
    def kv(q):
        if str(q) in SKKV: return
        isv=q>=2; hi=q%2
        a("s_add_u32 s80, s32, %d\ns_add_u32 s81, s80, 4096"%(hi*8192))
        for j in range(8):
            d=RAW+32*q+4*j
            a.vmem("buffer_load_dwordx4 v[%d:%d], v%d, %s, %s offen offset:%d %s"%(d,d+3,VL16,S4(SV if isv else SK),"s81" if j>=4 else "s80",1024*(j%4),KVF),("kv",q))
    xw(0)
    if PRO: xw(1,"x")
    a("s_cmp_eq_u32 s28, 0")
    for i in (2,3,4,5): a("s_cselect_b32 s%d, s%d, s%d"%(8+i,8+i,16+i))
    a("s_cselect_b32 s72, s72, s74\ns_cselect_b32 s73, s73, s75")
    srd(a,SK,10,11,8<<20); srd(a,SV,12,13,8<<20)
    ws_srd(a,SO,WS_O,16<<20); ws_srd(a,SFL,WS_FLAG,65536)
    srd(a,SWO,72,73,4<<20); srd(a,SDBG,6,7,256)
    a("v_lshl_add_u32 v%d, v%d, 10, v%d"%(VOD,VT0,VT2))
    for j in range(1,4): a("v_add_u32 v%d, %d, v%d"%(VOD+j,j*3072,VOD))
    a("v_lshl_add_u32 v%d, v%d, 8, v%d"%(VVW,VT0,VT2))
    a("v_and_b32 v%d, 15, v%d"%(VT2,VL))
    a("v_xor_b32 v%d, v%d, v%d"%(VT2,VT2,VT0))
    a("v_lshlrev_b32 v%d, 4, v%d"%(VT2,VT2))
    a("v_lshl_add_u32 v%d, v%d, 8, v%d"%(VKW,VT0,VT2))
    if TLBW:
        Lt=a.newlabel("Ltlb")
        ws_srd(a,SEX,WS_EX,16<<20); srd(a,SOUT,4,5,2<<20)
        a("s_cmp_lg_u32 s34, 3\ns_cbranch_scc1 %s"%Lt)
        a("v_mov_b32 v22, 0\ns_mov_b64 exec, 1")
        a("buffer_load_dword v23, v22, %s, s32 offen"%S4(SV))
        a("buffer_load_dword v23, v22, %s, s32 offen"%S4(SK))
        a("s_mov_b32 s80, 0x200000")
        a("buffer_load_dword v23, v22, %s, 0 offen"%S4(SW))
        a("buffer_load_dword v23, v22, %s, s80 offen"%S4(SW))
        a("s_lshl_b32 s80, s29, 20")
        a("buffer_load_dword v23, v22, %s, s80 offen"%S4(SWO))
        a("s_lshl_b32 s80, s26, 21")
        a("buffer_load_dword v23, v22, %s, s80 offen"%S4(SO))
        a("s_lshl_b32 s80, s28, 3\ns_add_u32 s80, s80, s30\ns_lshl_b32 s80, s80, 2\ns_add_u32 s80, s80, s31\ns_lshl_b32 s80, s80, %d"%(17 if EXB else 18))
        a("buffer_load_dword v23, v22, %s, s80 offen"%S4(SEX))
        a("buffer_load_dword v23, v22, %s, 0 offen"%S4(SOUT))
        a("buffer_load_dword v23, v22, %s, 0 offen"%S4(SFL))
        a("s_mov_b64 exec, -1")
        a.label(Lt)
    a("s_barrier")
    xw(1,"w" if PRO else "wx")
    Ln=a.newlabel("Lnl")
    a("s_cmp_lg_u32 s2, 0\ns_cbranch_scc1 %s\ns_cmp_lg_u32 s34, 0\ns_cbranch_scc1 %s"%(Ln,Ln))
    a("s_memrealtime s[84:85]\ns_waitcnt lgkmcnt(0)\ns_or_b32 s84, s84, 1")
    a("v_mov_b32 v24, s84\nv_mov_b32 v25, s85\nv_mov_b32 v26, 0")
    a("s_mov_b64 exec, 1")
    a("buffer_store_dwordx2 v[24:25], v26, %s, 0 offen sc1"%S4(SDBG))
    a("s_mov_b64 exec, -1")
    a.label(Ln)
    def p1loop(SCHED):
        sched={t:([("xw",t+2)] if t+2<8 else []) for t in range(8)}
        for q,ch in enumerate(SCHED):
            if ch=='p': kv(q)
            else: sched[int(ch)].append(("kv",q))
        for t in range(8):
            a.wait_vm(("xw",t))
            if t==0: stamp(a,"xw0","p")
            a("s_barrier")
            stamp(a,"b%d"%t,"p")
            for tk in sched.get(t,[]): (xw if tk[0]=="xw" else kv)(tk[1])
            if t==5:
                if WOPF:
                    a("s_lshl_b32 s80, s29, 10\ns_lshl_b32 s81, s30, 7\ns_add_u32 s80, s80, s81\ns_lshl_b32 s81, s34, 5\ns_add_u32 s80, s80, s81")
                    a("s_lshl_b32 s80, s80, 10\ns_lshl_b32 s81, s31, 8\ns_add_u32 s80, s80, s81")
                    a("v_lshrrev_b32 v24, 1, v%d\nv_lshlrev_b32 v24, 10, v24\nv_and_b32 v25, 1, v%d\nv_lshl_add_u32 v24, v25, 7, v24"%(VL,VL))
                    a.vmem("buffer_load_dword v23, v24, %s, s80 offen %s"%(S4(SWO),WOPFF),"pf")
                nonce_issue(a,28)
            if t in (6,7):
                hi=t-6
                a.wait_lgkm0() if a.lgkm else None
                a.wait_vm(("kv",hi))
                a("s_add_u32 s80, s8, %d"%(98304+hi*4*8192))
                for x in range(4):
                    a("v_xor_b32 v%d, %d, v%d\nv_add_u32 v%d, s80, v%d"%(24+x,x<<6,VKW,24+x,24+x))
                for j in range(8):
                    d=RAW+32*hi+4*j
                    a.ds("ds_write_b128 v%d, v[%d:%d] offset:%d"%(24+(j%4),d,d+3,j*1024),"KW")
                if t==7 and VEARLY:
                    a.wait_lgkm0()
                    a.wait_vm(("kv",2))
                    a("v_add_u32 v24, s8, v%d"%VVW)
                    for j in range(8):
                        d=RAW+64+4*j
                        a.ds("ds_write_b128 v24, v[%d:%d] offset:%d"%(d,d+3,j*1024),"VW")
        a.wait_lgkm0()

    if SCHEDB:
        vm0=list(a.vm); lg0=list(a.lgkm)
        a("s_add_u32 s80, s30, s31\ns_and_b32 s80, s80, 1\ns_cmp_eq_u32 s80, 0\ns_cbranch_scc0 P1_B")
        p1loop(SCHED)
        a("s_branch P1_J")
        a.label("P1_B")
        a.vm=list(vm0); a.lgkm=list(lg0)
        p1loop(SCHEDB)
        a.label("P1_J")
        a.vm=["nonce"]
    else:
        p1loop(SCHED)
    a("s_barrier")
    stamp(a,"b8","p")
    a("s_lshl_b32 s35, s31, 2")
    a("s_lshl_b32 s27, s29, 10\ns_lshl_b32 s80, s34, 4\ns_add_u32 s27, s27, s80\ns_lshl_b32 s27, s27, 10\ns_lshl_b32 s80, s31, 8\ns_add_u32 s27, s27, s80")
    a("s_lshl_b32 s3, s26, 5\ns_lshl_b32 s80, s30, 2\ns_add_u32 s3, s3, s80\ns_add_u32 s3, s3, s34\ns_lshl_b32 s3, s3, 16")
    def wo(s):
        a("s_add_u32 s80, s35, %d\ns_and_b32 s80, s80, 15\ns_lshl_b32 s80, s80, 16"%s)
        a("s_add_u32 m0, s9, %d"%WOS[s%4])
        a("s_add_u32 s80, s80, s27")
        for j in range(4): a.vmem("buffer_load_dwordx4 v%d, %s, s80 offen offset:%d %s lds"%(VOD+j,S4(SWO),1024*j,WOF),("st",s))
    def ol(s):
        a("s_add_u32 s80, s35, %d\ns_and_b32 s80, s80, 15\ns_lshl_b32 s80, s80, 12"%s)
        a("s_add_u32 m0, s9, %d"%OS[s%4])
        a("s_add_u32 s80, s80, s3")
        for j in range(4): a.vmem("buffer_load_dwordx4 v%d, %s, s80 offen offset:%d %s lds"%(VL16,S4(SO),1024*j,OLF),("st",s))
    a.wait_vm([("kv",2),("kv",3),"nonce"])
    stamp(a,"v_land","p")
    for hi in ([1] if VEARLY else [0,1]):
        a("s_add_u32 s80, s8, %d"%(hi*4*8192))
        a("v_add_u32 v24, s80, v%d"%VVW)
        for j in range(8):
            d=RAW+64+32*hi+4*j
            a.ds("ds_write_b128 v24, v[%d:%d] offset:%d"%(d,d+3,j*1024),"VW")
        a.wait_lgkm0()
    a("s_barrier")
    stamp(a,"b9","p")
    nonce_finish(a,28)
    wo(0); wo(1)
    a("s_lshl_b32 s10, s26, 3\ns_add_u32 s10, s10, s30\ns_lshl_b32 s10, s10, 2\ns_add_u32 s10, s10, s34\ns_lshl_b32 s10, s10, 6")
    a("v_and_b32 v24, 7, v%d"%VL)
    a("v_lshrrev_b32 v25, 1, v24")
    a("v_cmp_ne_u32 s[12:13], s31, v25")
    a("v_lshlrev_b32 v24, 3, v24")
    a("v_mov_b32 v28, s84\nv_mov_b32 v29, s85")
    a("s_barrier")
    stamp(a,"b10","p")
    wo(2); wo(3)
    a.wait_vm(("st",1))
    a("s_barrier")
    a.wait_vm(("st",2))
    a("s_barrier")
    a.wait_vm(("st",3))
    a("s_barrier")
    Lp=a.newlabel("Lp1")
    a.label(Lp)
    a("buffer_load_dwordx2 v[26:27], v24, %s, s10 offen sc1"%S4(SFL))
    a("s_waitcnt vmcnt(0)")
    a("v_cmp_ne_u64 vcc, v[26:27], v[28:29]")
    a("s_nop 4")
    a("s_and_b64 vcc, vcc, s[12:13]")
    if SLP:
        L2=a.newlabel("Lp2")
        a("s_cbranch_vccz %s\ns_sleep %d\ns_branch %s"%(L2,SLP,Lp)); a.label(L2)
    else:
        a("s_cbranch_vccnz %s"%Lp)
    a.vm=[]
    stamp(a,"flags","p")
    ol(4); ol(5); wo(4); wo(5)
    for t in range(3,16):
        need=min(t+1,15)
        a.wait_vm(("st",need))
        stamp(a,"pre_c%d"%t,"p")
        a("s_barrier")
        if t+3<=15 and t+3>=6:
            s=t+3
            if s<=7: ol(s); wo(s)
            else: wo(s); ol(s)
    stamp(a,"p_end","p")
    stamp_flush(a,len(PS),"p")
    a("s_endpgm")

def consumer(a):
    a.lgkm=[]; a.vm=[]
    VL=2; VL16=3; VXA=4; VWA=8; VKA=12; VVA=13; VTB=18; VR_=19; VT0=20; VT1=21; VT2=22; VT3=23
    ACC=32; AF=96; BF=112; QF=96; KFR=32; SA=64; PF=128; TM=152; OB=136
    a("s_and_b32 s32, s33, 3")
    a("s_lshr_b32 s34, s33, 2")
    a("v_and_b32 v%d, 3, v%d"%(VT0,VL))
    a("v_bfe_u32 v%d, v%d, 3, 1"%(VT1,VL))
    a("v_lshl_add_u32 v%d, v%d, 2, v%d"%(VT1,VT1,VT0))
    a("v_lshrrev_b32 v%d, 5, v%d"%(VT2,VL))
    a("v_xor_b32 v%d, v%d, v%d"%(VT1,VT1,VT2))
    a("v_lshlrev_b32 v%d, 4, v%d"%(VT1,VT1))
    a("v_lshl_add_u32 v%d, v%d, 10, v%d"%(VT1,VT0,VT1))
    a("v_bfe_u32 v%d, v%d, 2, 3"%(VT0,VL))
    a("v_lshl_add_u32 v%d, v%d, 7, v%d"%(VT1,VT0,VT1))
    a("s_lshl_b32 s80, s32, 12")
    a("v_add_u32 v%d, s80, v%d"%(VT1,VT1))
    for s in range(4): a("v_xor_b32 v%d, %d, v%d"%(VXA+s,32*s,VT1))
    tr_base(a,VTB,VL,VR_,VT2)
    a("s_lshl_b32 s81, s33, 13")
    a("s_lshl_b32 s82, s34, 14\ns_add_u32 s82, s82, 16384")
    for t in range(4):
        a("v_xor_b32 v%d, %d, v%d"%(VT2,t,VR_))
        a("v_lshl_add_u32 v%d, v%d, 6, v%d"%(VVA+t,VT2,VTB))
        a("v_add_u32 v%d, s82, v%d"%(VWA+t,VVA+t))
        a("v_add_u32 v%d, s81, v%d"%(VVA+t,VVA+t))
    a("v_and_b32 v%d, 3, v%d"%(VT0,VL))
    a("v_bfe_u32 v%d, v%d, 2, 1"%(VT1,VL))
    a("v_lshl_add_u32 v%d, v%d, 3, v%d"%(VT0,VT1,VT0))
    a("v_bfe_u32 v%d, v%d, 3, 1"%(VT1,VL))
    a("v_lshl_add_u32 v%d, v%d, 2, v%d"%(VT0,VT1,VT0))
    a("v_bfe_u32 v%d, v%d, 4, 1"%(VT1,VL))
    a("v_lshl_add_u32 v%d, v%d, 4, v%d"%(VT0,VT1,VT0))
    a("v_and_b32 v%d, 15, v%d"%(VT1,VT0))
    a("v_lshrrev_b32 v%d, 5, v%d"%(VT2,VL))
    a("v_xor_b32 v%d, v%d, v%d"%(VT1,VT1,VT2))
    a("v_lshlrev_b32 v%d, 4, v%d"%(VT1,VT1))
    a("v_lshl_add_u32 v%d, v%d, 8, v%d"%(VKA,VT0,VT1))
    a("s_add_u32 s81, s81, 98304")
    a("v_add_u32 v%d, s81, v%d"%(VKA,VKA))
    for i in range(64): a("v_mov_b32 v%d, 0"%(ACC+i))
    a("s_waitcnt lgkmcnt(0)")
    ws_srd(a,SO,WS_O,16<<20); ws_srd(a,SEX,WS_EX,16<<20); ws_srd(a,SFL,WS_FLAG,65536)
    srd(a,SOUT,4,5,2<<20); srd(a,SDBG,6,7,256)
    a("s_barrier")
    stamp(a,"pb1","c")
    if SENT:
        Li=a.newlabel("Lini")
        a("s_cmp_lg_u32 s32, s29\ns_cbranch_scc1 %s"%Li)
        a("s_lshl_b32 s3, s28, 3\ns_add_u32 s3, s3, s30\ns_lshl_b32 s3, s3, 2\ns_add_u32 s3, s3, s31")
        for i in range(4): a("v_mov_b32 v%d, -1"%(96+i))
        for q in range(1,4):
            a("s_add_u32 s82, s29, %d\ns_and_b32 s82, s82, 3"%q)
            a("s_lshl_b32 s80, s3, 2\ns_add_u32 s80, s80, s29\ns_lshl_b32 s80, s80, 2\ns_add_u32 s80, s80, s82\ns_lshl_b32 s80, s80, 1\ns_add_u32 s80, s80, s34\ns_lshl_b32 s80, s80, 12")
            for i in range(4): a("buffer_store_dwordx4 v[96:99], v%d, %s, s80 offen offset:%d sc1"%(VL16,S4(SEX),1024*i))
        a.label(Li)
    a("s_mov_b32 s3, 0\ns_mov_b32 s27, 0")
    a.label("C1_LOOP")
    a("s_barrier")
    def rdA(s,tt):
        for i in range(2):
            a.ds("ds_read_b64_tr_b16 v[%d:%d], v%d offset:%d"%(AF+4*tt+2*i,AF+4*tt+2*i+1,VWA+tt,s*4096+i*1024),("A",s,tt))
    def rdB(s): a.ds("ds_read_b128 v[%d:%d], v%d"%(BF+4*s,BF+4*s+3,VXA+s),("B",s))
    rdB(0); rdA(0,0); rdA(0,1); rdA(0,2); rdA(0,3); rdB(1); rdB(2); rdB(3)
    a("s_add_u32 s27, s27, 1\ns_cmp_eq_u32 s27, 3\ns_cselect_b32 s27, 0, s27\ns_mov_b32 s80, 49152\ns_cselect_b32 s80, -98304, s80")
    for s in range(4):
        for tt in range(4):
            a.wait_lgkm([("A",s,tt),("B",s)])
            if not P1NOMM: mfma(a,ACC+16*tt,AF+4*tt,BF+4*s)
            if s<3: rdA(s+1,tt)
            if s==3: a("v_add_u32 v%d, s80, v%d\nv_add_u32 v%d, s80, v%d"%(VWA+tt,VWA+tt,VXA+tt,VXA+tt))
    a("s_add_u32 s3, s3, 1\ns_cmp_lt_u32 s3, 8\ns_cbranch_scc1 C1_LOOP")
    stamp(a,"q_end","c")
    a("s_nop 7")
    for t in range(4):
        for i in range(8): a("v_cvt_pk_bf16_f32 v%d, v%d, v%d"%(QF+8*t+i,ACC+16*t+2*i,ACC+16*t+2*i+1))
    a("s_barrier")
    stamp(a,"b8","c")
    nonce_issue(a,24)
    for s in range(8):
        a("v_xor_b32 v%d, %d, v%d"%(VT0+(s%2),32*s,VKA))
        a.ds("ds_read_b128 v[%d:%d], v%d"%(KFR+4*s,KFR+4*s+3,VT0+(s%2)),("KF",s))
    for s in range(8):
        a.wait_lgkm(("KF",s))
        mfma(a,SA,KFR+4*s,QF+4*s,s==0)
    stamp(a,"s_done","c")
    a("s_mov_b32 s80, 0x%x"%f2u(SCALE_LOG2E))
    a("s_nop 7\ns_nop 2")
    M=TM; T1=TM+1; SUM=TM+3
    a("v_max3_f32 v%d, v%d, v%d, v%d"%(M,SA,SA+1,SA+2))
    for i in range(3,15,2): a("v_max3_f32 v%d, v%d, v%d, v%d"%(M,M,SA+i,SA+i+1))
    a("v_max_f32 v%d, v%d, v%d"%(M,M,SA+15))
    a("v_mov_b32 v%d, v%d\ns_nop 1\nv_permlane32_swap_b32 v%d, v%d\ns_nop 1\nv_max_f32 v%d, v%d, v%d"%(T1,M,M,T1,M,M,T1))
    a("v_mul_f32 v%d, s80, v%d"%(M,M))
    for i in range(16): a("v_fma_f32 v%d, v%d, s80, -v%d"%(SA+i,SA+i,M))
    for i in range(16): a("v_exp_f32 v%d, v%d"%(SA+i,SA+i))
    a("s_nop 0")
    a("v_add_f32 v%d, v%d, v%d"%(SUM,SA,SA+1))
    a("v_add_f32 v%d, v%d, v%d"%(T1,SA+2,SA+3))
    for i in range(4,16,2):
        a("v_add_f32 v%d, v%d, v%d"%(SUM,SUM,SA+i))
        a("v_add_f32 v%d, v%d, v%d"%(T1,T1,SA+i+1))
    a("v_add_f32 v%d, v%d, v%d"%(SUM,SUM,T1))
    a("v_mov_b32 v%d, v%d\ns_nop 1\nv_permlane32_swap_b32 v%d, v%d\ns_nop 1\nv_add_f32 v%d, v%d, v%d"%(T1,SUM,SUM,T1,SUM,SUM,T1))
    a("v_rcp_f32 v%d, v%d\ns_nop 0"%(SUM,SUM))
    for i in range(16): a("v_mul_f32 v%d, v%d, v%d"%(SA+i,SA+i,SUM))
    for i in range(8): a("v_cvt_pk_bf16_f32 v%d, v%d, v%d"%(PF+i,SA+2*i,SA+2*i+1))
    stamp(a,"sm_done","c")
    a.wait_vm0()
    nonce_finish(a,24)
    stamp(a,"pre_b9","c")
    a("s_barrier")
    stamp(a,"b9","c")
    def rdV(t,u):
        for i in range(2):
            a.ds("ds_read_b64_tr_b16 v[%d:%d], v%d offset:%d"%(QF+16*u+4*t+2*i,QF+16*u+4*t+2*i+1,VVA+t,u*4096+i*1024),("VF",t,u))
    for t in range(4): rdV(t,0)
    for t in range(3): rdV(t,1)
    for u in range(2):
        for t in range(4):
            a.wait_lgkm(("VF",t,u))
            mfma(a,ACC+16*t,QF+16*u+4*t,PF+4*u,u==0)
            if u==0 and t==0: rdV(3,1)
    stamp(a,"pv_done","c")
    a("s_lshl_b32 s80, s26, 5\ns_lshl_b32 s81, s30, 2\ns_add_u32 s80, s80, s81\ns_add_u32 s80, s80, s32\ns_lshl_b32 s80, s80, 6")
    a("s_lshl_b32 s81, s31, 1\ns_add_u32 s81, s81, s34\ns_lshl_b32 s81, s81, 3\ns_add_u32 s80, s80, s81\ns_lshl_b32 s80, s80, 10\ns_add_u32 s81, s80, 4096")
    a("s_lshl_b32 s82, s34, 15\ns_lshl_b32 s83, s32, 12\ns_add_u32 s82, s82, s83")
    a("v_add_u32 v%d, s82, v%d"%(VT0,VL16))
    for t in range(4):
        for i in range(8): a("v_cvt_pk_bf16_f32 v%d, v%d, v%d"%(OB+8*t+i,ACC+16*t+2*i,ACC+16*t+2*i+1))
        for u in range(2):
            ks=2*t+u
            a("buffer_store_dwordx4 v[%d:%d], v%d, %s, %s offen offset:%d %s"%(OB+8*t+4*u,OB+8*t+4*u+3,VL16,S4(SO),"s81" if ks>=4 else "s80",1024*(ks%4),OST))
    stamp(a,"o_st","c")
    ACC2=32; A2=64; B2=96; VA2=4; VB2=6
    a("s_lshl_b32 s80, s34, 1")
    for i in range(2):
        a("s_add_u32 s81, s80, %d"%i)
        a("v_xor_b32 v%d, s81, v%d"%(VT2,VR_))
        a("v_lshl_add_u32 v%d, v%d, 6, v%d"%(VA2+i,VT2,VTB))
        a("v_add_u32 v%d, %d, v%d"%(VA2+i,WOS[0],VA2+i))
    a("s_lshl_b32 s80, s32, 12")
    a("v_add_u32 v%d, s80, v%d"%(VB2,VL16))
    for i in range(32): a("v_mov_b32 v%d, 0"%(ACC2+i))
    a("s_lshl_b32 s35, s26, 3\ns_add_u32 s35, s35, s30\ns_lshl_b32 s35, s35, 2\ns_add_u32 s35, s35, s32\ns_lshl_b32 s35, s35, 3")
    a("s_lshl_b32 s80, s31, 1\ns_add_u32 s80, s80, s34\ns_add_u32 s35, s35, s80\ns_lshl_b32 s35, s35, 3")
    a("s_barrier")
    for ks in range(8):
        a.ds("ds_write_b128 v%d, v[%d:%d] offset:%d"%(VT0,OB+4*ks,OB+4*ks+3,(ks>>2)*16384+(ks&3)*1024),"OW")
    a.wait_lgkm0()
    def rd2(slot,k):
        st=k%4
        a.ds("ds_read_b128 v[%d:%d], v%d offset:%d"%(B2+4*st,B2+4*st+3,VB2,slot*16384+st*1024),("S",st))
        for tt in range(2):
            for i in range(2):
                a.ds("ds_read_b64_tr_b16 v[%d:%d], v%d offset:%d"%(A2+8*st+4*tt+2*i,A2+8*st+4*tt+2*i+1,VA2+tt,slot*16384+st*4096+i*1024),("S",st))
    a("s_mov_b32 s3, 0")
    a("s_barrier")
    stamp(a,"c0","c")
    for k in range(P2D): rd2(0,k)
    a.label("C2_LOOP")
    entry=list(a.lgkm)
    for q in range(4):
        for k in range(4):
            a.wait_lgkm(("S",k))
            for tt in range(2): mfma(a,ACC2+16*tt,A2+8*k+4*tt,B2+4*k)
            if k+P2D<4: rd2(q,k+P2D)
            else: rd2((q+1)%4,k+P2D-4)
            if q==3 and k==1: a("s_add_u32 s3, s3, 1\ns_cmp_lt_u32 s3, 4")
        if q==FLQ:
            Lf=a.newlabel("Lfl")
            a("s_cmp_lg_u32 s3, 0\ns_cbranch_scc1 %s"%Lf)
            a("s_waitcnt vmcnt(0)")
            flag_store(a,"s35",FL1)
            stamp(a,"o_done","c")
            a.label(Lf)
        if SENT and q==2:
            Lc=a.newlabel("Lck")
            a("s_cmp_lg_u32 s3, 2\ns_cbranch_scc1 %s"%Lc)
            a("s_lshl_b32 s80, s28, 2\ns_add_u32 s80, s80, s32\ns_lshl_b32 s80, s80, 3\ns_add_u32 s80, s80, s30\ns_lshl_b32 s80, s80, 2\ns_add_u32 s80, s80, s32\ns_lshl_b32 s80, s80, 3")
            a("s_lshl_b32 s81, s31, 1\ns_add_u32 s81, s81, s34\ns_add_u32 s80, s80, s81\ns_lshl_b32 s27, s80, 3")
            a("v_mov_b32 v24, 0")
            a("buffer_load_dwordx2 v[28:29], v24, %s, s27 offen sc1"%S4(SFL))
            a.label(Lc)
        if q<3: a("s_barrier")
    assert a.lgkm==entry,(a.lgkm,entry)
    a("s_cbranch_scc0 C2_DONE")
    a("s_barrier")
    a("s_branch C2_LOOP")
    a.label("C2_DONE")
    a.wait_lgkm0()
    stamp(a,"p2_end","c")
    KEEP=ACC2
    a("s_lshl_b32 s3, s28, 3\ns_add_u32 s3, s3, s30\ns_lshl_b32 s3, s3, 2\ns_add_u32 s3, s3, s31")
    a("s_nop 7\ns_nop 3")
    a("s_cmp_eq_u32 s32, s29")
    a("s_cbranch_scc1 C3_RECV")
    a("s_lshl_b32 s80, s3, 2\ns_add_u32 s80, s80, s32\ns_lshl_b32 s80, s80, 2\ns_add_u32 s80, s80, s29\ns_lshl_b32 s80, s80, 1\ns_add_u32 s80, s80, s34")
    if SENT:
        a("s_lshl_b32 s80, s80, 12")
        for i in range(16): a("v_cvt_pk_bf16_f32 v%d, v%d, v%d"%(64+i,KEEP+2*i,KEEP+2*i+1))
        for i in range(16): a("v_min_u32 v%d, 0xfffffffe, v%d"%(64+i,64+i))
        Lr=a.newlabel("Lrdy"); Lr2=a.newlabel("Lrdy")
        a.label(Lr)
        a("s_waitcnt vmcnt(0)")
        a("v_readfirstlane_b32 s82, v28\nv_readfirstlane_b32 s83, v29\ns_nop 3")
        a("s_cmp_eq_u64 s[82:83], s[84:85]\ns_cbranch_scc1 %s"%Lr2)
        a("buffer_load_dwordx2 v[28:29], v24, %s, s27 offen sc1\ns_branch %s"%(S4(SFL),Lr))
        a.label(Lr2)
        for i in range(4): a("buffer_store_dwordx4 v[%d:%d], v%d, %s, s80 offen offset:%d sc1"%(64+4*i,64+4*i+3,VL16,S4(SEX),1024*i))
        stamp(a,"sent","c")
        a("s_branch C_FIN")
        a.label("C3_RECV")
        for q in range(1,4):
            a("s_add_u32 s82, s29, %d\ns_and_b32 s82, s82, 3"%q)
            a("s_lshl_b32 s80, s3, 2\ns_add_u32 s80, s80, s29\ns_lshl_b32 s80, s80, 2\ns_add_u32 s80, s80, s82\ns_lshl_b32 s80, s80, 1\ns_add_u32 s80, s80, s34\ns_lshl_b32 s%d, s80, 12"%(8+q))
        a.label("C3_POLL")
        for q in range(1,4):
            base=64+16*(q-1)
            for i in range(4): a("buffer_load_dwordx4 v[%d:%d], v%d, %s, s%d offen offset:%d sc1"%(base+4*i,base+4*i+3,VL16,S4(SEX),8+q,1024*i))
        a("s_waitcnt vmcnt(0)")
        a("v_max3_u32 v112, v64, v65, v66")
        for i in range(67,111,2): a("v_max3_u32 v112, v112, v%d, v%d"%(i,i+1))
        a("v_max_u32 v112, v112, v111")
        a("v_cmp_eq_u32 vcc, -1, v112\ns_nop 4\ns_cbranch_vccnz C3_POLL")
        stamp(a,"polled","c")
        for q in range(3):
            for i in range(16):
                src=64+16*q+i
                a("v_lshlrev_b32 v112, 16, v%d\nv_and_b32 v113, 0xffff0000, v%d"%(src,src))
                a("v_add_f32 v%d, v%d, v112\nv_add_f32 v%d, v%d, v113"%(KEEP+2*i,KEEP+2*i,KEEP+2*i+1,KEEP+2*i+1))
    else:
        if EXB:
            a("s_lshl_b32 s80, s80, 12")
            for i in range(16): a("v_cvt_pk_bf16_f32 v%d, v%d, v%d"%(64+i,KEEP+2*i,KEEP+2*i+1))
            for i in range(4): a("buffer_store_dwordx4 v[%d:%d], v%d, %s, s80 offen offset:%d sc1"%(64+4*i,64+4*i+3,VL16,S4(SEX),1024*i))
        else:
            a("s_lshl_b32 s80, s80, 13\ns_add_u32 s81, s80, 4096")
            for i in range(8): a("buffer_store_dwordx4 v[%d:%d], v%d, %s, %s offen offset:%d sc1"%(KEEP+4*i,KEEP+4*i+3,VL16,S4(SEX),"s81" if i>=4 else "s80",1024*(i%4)))
        a("s_lshl_b32 s80, s3, 2\ns_add_u32 s80, s80, s32\ns_lshl_b32 s80, s80, 1\ns_add_u32 s80, s80, s34\ns_lshl_b32 s80, s80, 2\ns_add_u32 s80, s80, s29\ns_lshl_b32 s80, s80, 3\ns_add_u32 s80, s80, %d"%F3OFF)
        a("s_waitcnt vmcnt(0)")
        stamp(a,"sent","c")
        flag_store(a,"s80","sc1")
        a("s_branch C_FIN")
        a.label("C3_RECV")
        a("s_lshl_b32 s80, s3, 2\ns_add_u32 s80, s80, s29\ns_lshl_b32 s80, s80, 1\ns_add_u32 s80, s80, s34\ns_lshl_b32 s80, s80, 5\ns_add_u32 s80, s80, %d"%F3OFF)
        a("v_add_u32 v24, s29, v%d\nv_and_b32 v24, 3, v24\nv_and_b32 v25, 3, v%d\nv_cmp_ne_u32 s[82:83], 0, v25\nv_lshlrev_b32 v24, 3, v24"%(VL,VL))
        a("v_mov_b32 v28, s84\nv_mov_b32 v29, s85")
        a.label("C3_POLL")
        a("buffer_load_dwordx2 v[26:27], v24, %s, s80 offen sc1"%S4(SFL))
        a("s_waitcnt vmcnt(0)")
        a("v_cmp_ne_u64 vcc, v[26:27], v[28:29]\ns_nop 4\ns_and_b64 vcc, vcc, s[82:83]\ns_cbranch_vccnz C3_POLL")
        stamp(a,"polled","c")
        for q in range(1,4):
            a("s_add_u32 s82, s29, %d\ns_and_b32 s82, s82, 3"%q)
            a("s_lshl_b32 s80, s3, 2\ns_add_u32 s80, s80, s29\ns_lshl_b32 s80, s80, 2\ns_add_u32 s80, s80, s82\ns_lshl_b32 s80, s80, 1\ns_add_u32 s80, s80, s34")
            if EXB:
                a("s_lshl_b32 s80, s80, 12")
                base=64+16*(q-1)
                for i in range(4): a("buffer_load_dwordx4 v[%d:%d], v%d, %s, s80 offen offset:%d sc1"%(base+4*i,base+4*i+3,VL16,S4(SEX),1024*i))
            else:
                a("s_lshl_b32 s80, s80, 13\ns_add_u32 s81, s80, 4096")
                base=64+32*(q-1)
                for i in range(8): a("buffer_load_dwordx4 v[%d:%d], v%d, %s, %s offen offset:%d sc1"%(base+4*i,base+4*i+3,VL16,S4(SEX),"s81" if i>=4 else "s80",1024*(i%4)))
        if EXB:
            for q in range(3):
                a("s_waitcnt vmcnt(%d)"%(8-4*q))
                for i in range(16):
                    src=64+16*q+i
                    a("v_lshlrev_b32 v112, 16, v%d\nv_and_b32 v113, 0xffff0000, v%d"%(src,src))
                    a("v_add_f32 v%d, v%d, v112\nv_add_f32 v%d, v%d, v113"%(KEEP+2*i,KEEP+2*i,KEEP+2*i+1,KEEP+2*i+1))
        else:
            for q in range(3):
                a("s_waitcnt vmcnt(%d)"%(16-8*q))
                for i in range(32): a("v_add_f32 v%d, v%d, v%d"%(KEEP+i,KEEP+i,64+32*q+i))

    for i in range(16): a("v_cvt_pk_bf16_f32 v%d, v%d, v%d"%(64+i,KEEP+2*i,KEEP+2*i+1))
    a("v_and_b32 v24, 31, v%d\nv_lshlrev_b32 v24, 11, v24\nv_lshrrev_b32 v25, 5, v%d\nv_lshl_add_u32 v24, v25, 4, v24"%(VL,VL))
    a("s_lshl_b32 s80, s30, 2\ns_add_u32 s80, s80, s32\ns_lshl_b32 s80, s80, 16\ns_lshl_b32 s81, s28, 10\ns_add_u32 s80, s80, s81\ns_lshl_b32 s81, s31, 8\ns_add_u32 s80, s80, s81\ns_lshl_b32 s81, s34, 7\ns_add_u32 s80, s80, s81")
    for q in range(4): a("buffer_store_dwordx4 v[%d:%d], v24, %s, s80 offen offset:%d %s"%(64+4*q,64+4*q+3,S4(SOUT),32*q,OUTF))
    a.label("C_FIN")
    if STAMP:
        a("s_waitcnt vmcnt(0)")
        stamp(a,"fin","c")
        stamp_flush(a,len(CS),"c")
    a("s_endpgm")

def main():
    a=Asm()
    a.raw("; @launch grid=(256,1,1) block=(768,1,1) lds=163840")
    a.raw('.amdgcn_target "amdgcn-amd-amdhsa--gfx950"')
    a.raw(".text")
    gen(a)
    a.raw('.section .rodata,"a"')
    a.raw(kernel_desc(KNAME,168,102))
    open(sys.argv[1],"w").write(a.text())
main()
```
